```python
import torch

def _softmax(x, axis=-1):
    return torch.softmax(x, dim=axis)
def _gelu(x):
    return torch.nn.functional.gelu(x, approximate="tanh")
def _silu(x):
    return torch.nn.functional.silu(x)
def _sigmoid(x):
    return torch.sigmoid(x)
def _layernorm(x, axis=-1, eps=1e-5):
    m = x.mean(dim=axis, keepdim=True)
    v = x.var(dim=axis, keepdim=True, unbiased=False)
    return (x - m) / torch.sqrt(v + eps)
def _scatter_add(tgt, idx, src, axis=0):
    return tgt.clone().index_add_(axis, idx, src)
def _segment_sum(src, seg, n):
    out = torch.zeros((n,) + src.shape[1:], dtype=src.dtype)
    return out.index_add_(0, seg, src)
def _pad(x, pw):
    flat = tuple(v for pair in reversed(pw) for v in pair)
    return torch.nn.functional.pad(x, flat)

kernel_name = 'gather_scatter__edge_featured_mpnn_gatedgcn__graph'

def setup_inputs():

    _w = (lambda a: (lambda t: t.to(torch.bfloat16) if t.is_floating_point() else t)(torch.as_tensor(a)))
    N, deg, D, De = 50000, 16, 64, max(0, 1)
    E = N * deg
    return {
        "x": _w((lambda *s: torch.randn(*s, dtype=torch.bfloat16) * 0.4)(N, D)),
        "e_attr": _w((lambda *s: torch.randn(*s, dtype=torch.bfloat16) * 0.8)(E, De)),
        "src": _w((lambda lo, hi, *s: torch.randint(lo, hi, s))(0, N, E).to(torch.int64)),
        "dst": _w((lambda lo, hi, *s: torch.randint(lo, hi, s))(0, N, E).to(torch.int64)),
        "w_a": _w((lambda *s: torch.randn(*s, dtype=torch.bfloat16) * 0.8)(D, D)),
        "w_b": _w((lambda *s: torch.randn(*s, dtype=torch.bfloat16) * 0.4)(D, D)),
        "w_c": _w((lambda *s: torch.randn(*s, dtype=torch.bfloat16) * 0.8)(De, D)),
        "w_u": _w((lambda *s: torch.randn(*s, dtype=torch.bfloat16) * 0.05)(D, D)),
        "w_v": _w((lambda *s: torch.randn(*s, dtype=torch.bfloat16) * 0.05)(D, D)),
    }

def reference(x, e_attr, src, dst, w_a, w_b, w_c, w_u, w_v):
    N, D = x.shape
    hv = x @ w_v
    g = x[dst] @ w_a + x[src] @ w_b + e_attr @ w_c
    eta = _sigmoid(g)
    denom = _segment_sum(eta, dst, N) + 1e-6
    eta_n = eta / denom[dst]
    agg = _segment_sum(eta_n * hv[src], dst, N)
    z = x @ w_u + agg
    relu_z = torch.where(z > 0, z, 0 * z)
    return x + relu_z
```

```python
import sys
NAME = "gather_scatter__edge_featured_mpnn_gatedgcn__graph"
STAMP = "--stamp" in sys.argv
OUT = [a for a in sys.argv[1:] if not a.startswith("--")][0]

NCH, CHE = 250, 3200
CS = 19840
BS = 196
OFF_OFF = 5 << 20
WF_OFF = OFF_OFF + (256 << 10)
STAMP_OFF = 8 << 20
WS_BYTES = 16 << 20
NLOG2E = 0xbfb8aa3b
EPS = 0x358637bd
L = []
def e(s): L.append("    " + s)
def lab(s): L.append(s + ":")
def R(b, n): return f"v[{b}:{b+n-1}]"
def srd(d, base, nbytes, add=0):
    if add:
        e(f"s_add_u32 s{d}, s{base}, {add}"); e(f"s_addc_u32 s{d+1}, s{base+1}, 0")
    else:
        e(f"s_mov_b32 s{d}, s{base}"); e(f"s_mov_b32 s{d+1}, s{base+1}")
    e(f"s_mov_b32 s{d+2}, {nbytes}"); e(f"s_mov_b32 s{d+3}, 0x20000")
def scan_incl(v):
    for sh in (1, 2, 4, 8):
        e("s_nop 1"); e(f"v_add_u32_dpp v{v}, v{v}, v{v} row_shr:{sh} row_mask:0xf bank_mask:0xf bound_ctrl:0")
    e("s_nop 1"); e(f"v_add_u32_dpp v{v}, v{v}, v{v} row_bcast:15 row_mask:0xa bank_mask:0xf")
    e("s_nop 1"); e(f"v_add_u32_dpp v{v}, v{v}, v{v} row_bcast:31 row_mask:0xc bank_mask:0xf")
def kstart(name):
    L.append(f".globl {name}"); L.append(".p2align 8"); L.append(f".type {name},@function"); lab(name)
def kdesc(name, nv, ns):
    acc = (nv + 3) // 4 * 4
    return f""".p2align 6
.amdhsa_kernel {name}
  .amdhsa_next_free_vgpr {nv}
  .amdhsa_next_free_sgpr {ns}
  .amdhsa_accum_offset {acc}
  .amdhsa_group_segment_fixed_size 0
  .amdhsa_kernarg_size 96
  .amdhsa_user_sgpr_count 2
  .amdhsa_user_sgpr_kernarg_segment_ptr 1
  .amdhsa_system_sgpr_workgroup_id_x 1
  .amdhsa_float_denorm_mode_32 3
.end_amdhsa_kernel"""

def stamp(k):
    if STAMP: e(f"s_memrealtime s[{64+2*k}:{65+2*k}]")
def stamp_flush(n, wsreg, kern, widreg, tmp):
    if not STAMP: return
    e("s_waitcnt lgkmcnt(0)")
    e("s_mov_b64 exec, 1")
    e(f"s_lshl_b32 s62, s{widreg}, 6"); e(f"s_add_u32 s62, s62, {STAMP_OFF + kern*(1<<20)}")
    e(f"v_mov_b32 v{tmp}, s62")
    for k in range(n):
        e(f"v_mov_b32 v{tmp+1}, s{64+2*k}")
        e(f"global_store_dword v{tmp}, v{tmp+1}, s[{wsreg}:{wsreg+1}] offset:{4*k}")

K1 = "gcn_bin_kernel"
K1_LDS = 25600 + 1024 + 1024
def gen_k1():
    kstart(K1)
    stamp(0)
    e(f"s_cmp_ge_u32 s2, {NCH}")
    e("s_cbranch_scc1 K1_W")
    e("s_load_dwordx2 s[4:5], s[0:1], 8")
    e("s_load_dwordx4 s[8:11], s[0:1], 16")
    e("s_load_dwordx2 s[6:7], s[0:1], 88")
    e("v_lshlrev_b32 v1, 4, v0")
    e(f"s_mul_i32 s3, s2, {CHE*4}")
    e("v_add_u32 v2, s3, v1")
    e("v_lshrrev_b32 v3, 1, v2")
    for i in range(4, 8): e(f"v_mov_b32 v{i}, 0")
    e("v_lshrrev_b32 v18, 6, v0")
    e("v_mov_b32 v19, 1")
    e("s_waitcnt lgkmcnt(0)")
    e("global_load_dwordx4 v[8:11], v2, s[10:11]")
    e("global_load_dwordx4 v[12:15], v2, s[8:9]")
    e("global_load_dwordx2 v[16:17], v3, s[4:5]")
    e("ds_write_b128 v1, v[4:7]")
    e("ds_write_b128 v1, v[4:7] offset:12800")
    e("v_readfirstlane_b32 s12, v18")
    e(f"s_mov_b32 s13, {-BS & 0xffffffff}")
    e("s_mov_b32 s14, 0xffff0000")
    e(f"s_mul_i32 s15, s2, {CS}")
    e("s_waitcnt lgkmcnt(0)")
    e("s_barrier")
    e("s_waitcnt vmcnt(2)")
    stamp(1)
    for i in range(4):
        e(f"v_mul_u32_u24 v{20+i}, 85599, v{8+i}")
        e(f"v_lshrrev_b32 v{20+i}, 24, v{20+i}")
        e(f"v_lshlrev_b32 v{24+i}, 2, v{20+i}")
        e(f"ds_add_rtn_u32 v{28+i}, v{24+i}, v19")
    for i in range(4):
        e(f"v_mad_i32_i24 v{8+i}, v{20+i}, s13, v{8+i}")
        e(f"v_add_u32 v{8+i}, 1, v{8+i}")
    e("s_waitcnt vmcnt(0)")
    e("v_lshl_or_b32 v12, v16, 16, v12")
    e("v_and_or_b32 v13, v16, s14, v13")
    e("v_lshl_or_b32 v14, v17, 16, v14")
    e("v_and_or_b32 v15, v17, s14, v15")
    e("s_waitcnt lgkmcnt(0)")
    e("s_barrier")
    stamp(2)
    e("s_cmp_lg_u32 s12, 0")
    e("s_cbranch_scc1 K1_NOSCAN")
    e("ds_read_b128 v[32:35], v1")
    e("s_lshl_b32 s16, s2, 10")
    e(f"s_add_u32 s16, s16, {OFF_OFF}")
    e("v_add_u32 v44, s16, v1")
    e("s_waitcnt lgkmcnt(0)")
    for i in range(4):
        e(f"v_add_u32 v{32+i}, 2, v{32+i}")
        e(f"v_mul_u32_u24 v{32+i}, 21846, v{32+i}")
        e(f"v_lshrrev_b32 v{32+i}, 16, v{32+i}")
    e("v_add_u32 v38, v32, v33")
    e("v_add_u32 v39, v38, v34")
    e("v_add_u32 v40, v39, v35")
    e("v_mov_b32 v41, v40")
    scan_incl(41)
    e("v_sub_u32 v36, v41, v40")
    e("v_add_u32 v37, v36, v32")
    e("v_add_u32 v38, v36, v38")
    e("v_add_u32 v39, v36, v39")
    for i in range(4): e(f"v_lshlrev_b32 v{40+i}, 4, v{36+i}")
    e("ds_write_b128 v1, v[40:43] offset:26624")
    for i in range(4): e(f"v_lshl_or_b32 v{32+i}, v{32+i}, 16, v{36+i}")
    e("global_store_dwordx4 v44, v[32:35], s[6:7]")
    e("s_waitcnt lgkmcnt(0)")
    lab("K1_NOSCAN")
    for i in range(4):
        e(f"v_mul_u32_u24 v{20+i}, 21846, v{28+i}")
        e(f"v_lshrrev_b32 v{20+i}, 16, v{20+i}")
        e(f"v_add_lshl_u32 v{46+i}, v{28+i}, v{20+i}, 2")
        e(f"v_mad_u32_u24 v{50+i}, v{20+i}, 13, v{28+i}")
    e("s_barrier")
    stamp(3)
    for i in range(4): e(f"ds_read_b32 v{20+i}, v{24+i} offset:26624")
    e("v_add_u32 v2, s15, v1")
    e("v_add_u32 v3, 12800, v2")
    for i in range(4):
        e(f"s_waitcnt lgkmcnt({3-i+2*i})")
        e(f"v_add_u32 v{46+i}, v{46+i}, v{20+i}")
        e(f"v_add_u32 v{50+i}, v{50+i}, v{20+i}")
        e(f"ds_write_b32 v{46+i}, v{12+i} offset:1024")
        e(f"ds_write_b8 v{50+i}, v{8+i} offset:1036")
    e("s_waitcnt lgkmcnt(0)")
    e("s_barrier")
    stamp(4)
    e("ds_read_b128 v[4:7], v1 offset:1024")
    e("ds_read_b128 v[8:11], v1 offset:13824")
    e(f"v_cmp_gt_u32 vcc, {CS//16 - 800}, v0")
    e("s_waitcnt lgkmcnt(1)")
    e("global_store_dwordx4 v2, v[4:7], s[6:7]")
    e("s_and_saveexec_b64 s[16:17], vcc")
    e("s_cbranch_execz K1_END")
    e("s_waitcnt lgkmcnt(0)")
    e("global_store_dwordx4 v3, v[8:11], s[6:7]")
    lab("K1_END")
    if STAMP:
        e("s_waitcnt vmcnt(0)")
        stamp(5)
        e("s_lshl_b32 s18, s2, 4"); e("s_add_u32 s18, s18, s12")
        stamp_flush(6, 6, 0, 18, 56)
    e("s_endpgm")
    lab("K1_W")
    e(f"s_cmp_ge_u32 s2, {NCH+5}")
    e("s_cbranch_scc1 K1_X")
    e("v_cmp_gt_u32 vcc, 512, v0")
    e("s_and_saveexec_b64 s[16:17], vcc")
    e("s_cbranch_execz K1_X")
    e(f"s_sub_u32 s3, s2, {NCH}")
    e("s_lshl_b32 s12, s3, 2")
    e("s_lshr_b32 s13, 0x68547, s12")
    e("s_and_b32 s13, s13, 15")
    e("s_lshl_b32 s13, s13, 3")
    e("s_load_dwordx2 s[4:5], s[0:1], s13")
    e("s_load_dwordx2 s[6:7], s[0:1], 88")
    e("v_and_b32 v1, 3, v0")
    e("v_bfe_u32 v2, v0, 3, 2")
    e("v_lshl_add_u32 v1, v2, 2, v1")
    e("v_bfe_u32 v2, v0, 2, 1")
    e("v_lshl_add_u32 v1, v2, 5, v1")
    e("v_bfe_u32 v3, v0, 5, 1")
    e("s_mov_b32 s14, 1.0")
    e("s_cmp_eq_u32 s3, 2")
    e(f"s_cselect_b32 s14, {NLOG2E:#x}, s14")
    e("s_cmp_eq_u32 s3, 4")
    e("s_cbranch_scc1 K1_EXT")
    e("v_lshrrev_b32 v2, 8, v0")
    e("v_lshl_add_u32 v1, v2, 4, v1")
    e("v_bfe_u32 v2, v0, 6, 2")
    e("v_lshl_add_u32 v2, v3, 2, v2")
    e("v_lshlrev_b32 v2, 10, v2")
    e("v_lshl_add_u32 v1, v1, 1, v2")
    e("s_lshl_b32 s12, s3, 13")
    e(f"s_add_u32 s12, s12, {WF_OFF}")
    e("v_lshl_add_u32 v4, v0, 4, s12")
    e("s_waitcnt lgkmcnt(0)")
    for j in range(8): e(f"global_load_ushort v{8+j}, v1, s[4:5] offset:{128*j}")
    e("s_waitcnt vmcnt(0)")
    for j in range(8):
        e(f"v_lshlrev_b32 v{8+j}, 16, v{8+j}")
        e(f"v_mul_f32 v{8+j}, s14, v{8+j}")
    for j in range(4): e(f"v_cvt_pk_bf16_f32 v{16+j}, v{8+2*j}, v{9+2*j}")
    e("global_store_dwordx4 v4, v[16:19], s[6:7]")
    e("s_endpgm")
    lab("K1_EXT")
    e("v_cmp_gt_u32 vcc, 128, v0")
    e("s_and_saveexec_b64 s[16:17], vcc")
    e("s_cbranch_execz K1_X")
    e("v_lshrrev_b32 v2, 6, v0")
    e("v_lshl_add_u32 v1, v2, 4, v1")
    e("v_lshlrev_b32 v1, 1, v1")
    e(f"s_mov_b32 s12, {WF_OFF + 32768}")
    e("v_lshl_add_u32 v4, v0, 2, s12")
    e("s_waitcnt lgkmcnt(0)")
    e("global_load_ushort v8, v1, s[4:5]")
    e("s_waitcnt vmcnt(0)")
    e("v_lshlrev_b32 v8, 16, v8")
    e(f"v_mul_f32 v8, {NLOG2E:#x}, v8")
    e("v_mov_b32 v12, 0")
    e("v_cvt_pk_bf16_f32 v9, v12, v8")
    e("v_sub_f32 v10, v8, v9")
    e("v_cvt_pk_bf16_f32 v10, v12, v10")
    e("v_or_b32 v9, 0x7000, v9")
    e("v_cmp_eq_u32 vcc, 0, v3")
    e("s_nop 1")
    e("v_cndmask_b32 v9, v10, v9, vcc")
    e("global_store_dword v4, v9, s[6:7]")
    lab("K1_X")
    e("s_endpgm")

K2 = NAME + "_kernel"
CNT, HIST2, FLAG, ORD, TRASH, TABLE, INFO, ELL, WU, RING = 0, 1024, 1280, 2048, 3072, 4096, 6144, 8192, 40960, 49152
K2_LDS = RING + 8 * 12288
C0, C1, XA, EA, EB_A, LANE, ONE = 1, 2, 3, 7, 8, 9, 10
T0 = 11
WE, WB, WV, NUM, DEN, AT, G0, G1, VV, X, EB, REC4, RECE = 16, 20, 52, 84, 116, 148, 180, 196, 212, 228, 244, 248, 252
sX, sOUT, sWS = 4, 6, 8
SRDX, SRDO, SRDW, SRDOFF = 12, 16, 20, 24
sB, sWV, sG, sT, sNB, sNN, sNEEDB, sRB, sC128, sPADC, sMODE, sSH = 28, 29, 30, 31, 32, 33, 34, 35, 36, 37, 38, 39
sK = 40
def mfma(d, a, b, c):
    cs = "0" if c is None else R(c, 16)
    return f"v_mfma_f32_32x32x16_bf16 {R(d,16)}, {R(a,4)}, {R(b,4)}, {cs}"
def P(b): return f"v[{b}:{b+1}]"
def dma_tile(rec, slot):
    out = []
    for q in range(4):
        out.append([f"v_mad_u32_u16 v{rec+q}, v{rec+q}, s{sC128}, v{C0 + (q & 1)}",
                    f"s_add_u32 m0, s{sRB}, {slot*4096 + q*1024}",
                    f"s_nop 0",
                    f"buffer_load_dwordx4 v{rec+q}, s[{SRDX}:{SRDX+3}], 0 offen lds"])
    return out
def xread(s, slot): return f"ds_read_b128 {R(X+4*s,4)}, v{XA+s} offset:{slot*4096}"
def g_mf(cb, d):
    return [mfma(d, WE + 2*cb, EB, AT + 16*cb)] + [mfma(d, WB + 16*cb + 4*s, X + 4*s, d) for s in range(4)]
def v_mf(cb):
    return [mfma(VV, WV + 16*cb + 4*s, X + 4*s, None if s == 0 else VV) for s in range(4)]
def trans_phase(op, g, extra):
    for i in range(17):
        for s in extra.get(i, []): e(s)
        if i < 16: e(f"{op} v{g+i}, v{g+i}")
def add1(g):
    for i in range(8): e(f"v_pk_add_f32 {P(g+2*i)}, {P(g+2*i)}, 1.0 op_sel_hi:[1,0]")
def acc(g, cb):
    for i in range(8):
        e(f"v_pk_add_f32 {P(DEN+16*cb+2*i)}, {P(DEN+16*cb+2*i)}, {P(g+2*i)}")
        e(f"v_pk_fma_f32 {P(NUM+16*cb+2*i)}, {P(g+2*i)}, {P(VV+2*i)}, {P(NUM+16*cb+2*i)}")

def body(k, j):
    vm = v_mf(0); d = dma_tile(REC4, k)
    ex = {1: [vm[0]], 4: [vm[1]], 7: [vm[2]], 10: [vm[3]],
          0: ["s_waitcnt lgkmcnt(0)"], 2: d[0], 5: d[1], 8: d[2], 11: d[3],
          13: [f"ds_read_b128 {R(REC4,4)}, v{EA} offset:{ELL + (j+4)*128}",
               f"ds_read_b32 v{RECE}, v{EB_A} offset:{ELL + (j+1)*128}"]}
    trans_phase("v_exp_f32", G0, ex)
    add1(G0)
    gm = g_mf(1, G1)
    trans_phase("v_rcp_f32", G0, {0: [gm[0]], 3: [gm[1]], 6: [gm[2]], 9: [gm[3]], 12: [gm[4]]})
    acc(G0, 0)
    vm = v_mf(1); k1 = (k + 1) % 3
    trans_phase("v_exp_f32", G1, {1: [vm[0]], 4: [vm[1]], 7: [vm[2]], 10: [vm[3]],
          2: ["s_waitcnt vmcnt(8)", xread(0, k1)], 5: [xread(1, k1)], 8: [xread(2, k1)], 11: [xread(3, k1)]})
    e("s_waitcnt lgkmcnt(4)")
    e(f"v_pk_sub_u16 v{EB}, v{RECE}, s{sPADC} clamp")
    add1(G1)
    gm = g_mf(0, G0)
    trans_phase("v_rcp_f32", G1, {0: [gm[0]], 3: ["s_waitcnt lgkmcnt(3)", gm[1]], 6: ["s_waitcnt lgkmcnt(2)", gm[2]],
          9: ["s_waitcnt lgkmcnt(1)", gm[3]], 12: ["s_waitcnt lgkmcnt(0)", gm[4]]})
    acc(G1, 1)

def gen_k2():
    RA, RBk = 116, 180
    kstart(K2)
    stamp(0)
    e("s_cmp_ge_u32 s2, 256")
    e("s_cbranch_scc1 K2_X")
    e(f"s_load_dwordx2 s[{sWS}:{sWS+1}], s[0:1], 88")
    e(f"s_load_dwordx2 s[{sX}:{sX+1}], s[0:1], 0")
    e(f"s_load_dwordx2 s[{sOUT}:{sOUT+1}], s[0:1], 72")
    e("s_and_b32 s3, s2, 7")
    e(f"s_lshl_b32 s{sB}, s3, 5")
    e("s_lshr_b32 s3, s2, 3")
    e(f"s_add_u32 s{sB}, s{sB}, s3")
    e(f"v_lshrrev_b32 v{T0}, 6, v0")
    e(f"v_lshrrev_b32 v{T0+1}, 3, v0")
    e(f"v_readfirstlane_b32 s{sWV}, v{T0}")
    e(f"v_lshlrev_b32 v{T0+2}, 10, v{T0+1}")
    e(f"v_and_b32 v{LANE}, 63, v0")
    e(f"v_lshlrev_b32 v{T0+3}, 4, v{LANE}")
    e(f"s_lshl_b32 s42, s{sB}, 2")
    for r in range(1, 4): e(f"s_add_u32 s{42+r}, s42, {r*65536}")
    e(f"s_lshl_b32 s46, s{sWV}, 12")
    e(f"s_add_u32 m0, s46, {WU}")
    e(f"s_add_u32 s46, s46, {WF_OFF}")
    e(f"s_mov_b32 s47, {WF_OFF + 32768}")
    e(f"v_lshlrev_b32 v{T0+4}, 2, v{LANE}")
    e("s_waitcnt lgkmcnt(0)")
    srd(SRDOFF, sWS, NCH * 1024, OFF_OFF)
    for r in range(4): e(f"buffer_load_dword v{240+r}, v{T0+2}, s[{SRDOFF}:{SRDOFF+3}], s{42+r} offen")
    srd(SRDW, sWS, WS_BYTES)
    for q in range(4): e(f"buffer_load_dwordx4 v{T0+3}, s[{SRDW}:{SRDW+3}], s46 offen offset:{q*1024} lds")
    e(f"buffer_load_dword v{WE}, v{T0+4}, s[{SRDW}:{SRDW+3}], s47 offen")
    e(f"buffer_load_dword v{WE+2}, v{T0+4}, s[{SRDW}:{SRDW+3}], s47 offen offset:256")
    srd(SRDX, sX, 6400000)
    srd(SRDO, sOUT, 6400000)
    e(f"v_lshlrev_b32 v{T0}, 4, v0")
    for i in range(4): e(f"v_mov_b32 v{X+i}, 0xffff")
    for q in range(4): e(f"ds_write_b128 v{T0}, {R(X,4)} offset:{ELL + q*8192}")
    e(f"v_mov_b32 v{X+4}, 0")
    e(f"v_lshlrev_b32 v{X+5}, 2, v0")
    e(f"ds_write_b32 v{X+5}, v{X+4}")
    e(f"v_and_b32 v{X+6}, 255, v0")
    e(f"v_mov_b32 v{X+7}, v{X+6}")
    e(f"v_mov_b32 v{X+9}, 32")
    e(f"v_mov_b32 v{X+10}, 0")
    for (thr, addp, st) in ((8, 24, 64), (24, 16, 64), (40, 16, 128), (200, 0, 0)):
        e(f"v_cmp_le_u32 vcc, {thr}, v{X+6}")
        e(f"v_mov_b32 v{X+11}, {addp}")
        e(f"v_mov_b32 v{X+8}, {st}")
        e(f"v_cndmask_b32 v{X+11}, v{X+10}, v{X+11}, vcc")
        e(f"v_cndmask_b32 v{X+9}, v{X+9}, v{X+8}, vcc")
        e(f"v_add_u32 v{X+7}, v{X+7}, v{X+11}")
    e(f"v_lshrrev_b32 v{X+8}, 5, v{X+7}")
    e(f"v_and_b32 v{X+7}, 31, v{X+7}")
    e(f"v_lshlrev_b32 v{X+8}, 12, v{X+8}")
    e(f"v_lshl_add_u32 v{X+8}, v{X+7}, 2, v{X+8}")
    e(f"v_add_u32 v{X+8}, {ELL + 128}, v{X+8}")
    e(f"v_mov_b32 v{X+7}, {0x40000 + TRASH}")
    e(f"v_cndmask_b32 v{X+8}, v{X+8}, v{X+7}, vcc")
    e(f"v_lshlrev_b32 v{X+6}, 3, v{X+6}")
    e(f"ds_write_b64 v{X+6}, {P(X+8)} offset:{TABLE}")
    e(f"v_mov_b32 v{ONE}, 1")
    e(f"v_mov_b32 v{WE+1}, 0"); e(f"v_mov_b32 v{WE+3}, 0")
    for i in range(1, 4): e(f"v_mov_b32 v{EB+i}, 0")
    e(f"s_movk_i32 s{sC128}, 128")
    e(f"s_mov_b32 s{sPADC}, 50000")
    e(f"s_mul_i32 s{sNB}, s{sB}, {BS}")
    e(f"s_sub_u32 s{sNN}, 50000, s{sNB}")
    e(f"s_min_u32 s{sNN}, s{sNN}, {BS}")
    e(f"s_lshl_b32 s3, s{sWV}, 2")
    e(f"s_lshr_b32 s{sG}, 0x17206543, s3")
    e(f"s_and_b32 s{sG}, s{sG}, 7")
    e(f"s_mul_i32 s{sRB}, s{sWV}, 12288")
    e(f"s_add_u32 s{sRB}, s{sRB}, {RING}")
    e(f"v_lshrrev_b32 v{X}, 5, v{LANE}")
    e(f"v_bfe_u32 v{X+1}, v{LANE}, 4, 1")
    e(f"v_lshl_or_b32 v{X}, v{X+1}, 1, v{X}")
    e(f"v_and_b32 v{X+2}, 7, v{LANE}")
    e(f"v_xor_b32 v{X}, v{X}, v{X+2}")
    e(f"v_lshlrev_b32 v{C0}, 4, v{X}")
    e(f"v_xor_b32 v{C1}, 64, v{C0}")
    e(f"v_and_b32 v{X+3}, 2, v{LANE}")
    e(f"v_or_b32 v{X+3}, v{X+3}, v{X+1}")
    e(f"v_and_b32 v{X+4}, 1, v{LANE}")
    e(f"v_lshl_or_b32 v{X+3}, v{X+4}, 2, v{X+3}")
    e(f"v_bfe_u32 v{X+4}, v{LANE}, 2, 2")
    e(f"v_lshl_add_u32 v{X+5}, v{X+3}, 2, v{X+4}")
    e(f"v_lshlrev_b32 v{X+3}, 7, v{X+3}")
    e(f"v_lshl_add_u32 v{X+3}, v{X+4}, 10, v{X+3}")
    e(f"v_add_u32 v{X+3}, s{sRB}, v{X+3}")
    e(f"v_lshrrev_b32 v{X+4}, 5, v{LANE}")
    e(f"v_lshlrev_b32 v{X+4}, 2, v{X+4}")
    e(f"v_xor_b32 v{X+4}, v{X+4}, v{X+2}")
    for s in range(4):
        e(f"v_xor_b32 v{X+6}, {s}, v{X+4}")
        e(f"v_lshl_add_u32 v{XA+s}, v{X+6}, 4, v{X+3}")
    e(f"s_lshl_b32 s3, s{sG}, 12")
    e(f"v_lshl_add_u32 v{EB_A}, v{X+5}, 2, s3")
    e(f"v_lshrrev_b32 v{X+5}, 3, v{LANE}")
    e(f"v_lshl_add_u32 v{EA}, v{X+5}, 4, s3")
    e(f"v_mul_u32_u24 v{T0+1}, {CS}, v{T0+1}")
    e(f"v_lshl_add_u32 v{T0+1}, v{X+2}, 4, v{T0+1}")
    e(f"v_add_u32 v{X+3}, 8, v{X+2}")
    e(f"v_bfrev_b32 v{X+4}, 1")
    for r in range(1, 4): e(f"s_mov_b32 s{42+r}, {r*64*CS}")
    e("s_waitcnt vmcnt(6)")
    stamp(1)
    for r in range(4):
        e(f"v_cmp_lt_u32_sdwa vcc, v{X+2}, v{240+r} src0_sel:DWORD src1_sel:WORD_1")
        e(f"v_mad_u32_u16 v{X+6+r}, v{240+r}, 16, v{T0+1}")
        e("s_nop 0")
        e(f"v_cndmask_b32 v{X+5}, v{X+4}, v{X+6+r}, vcc")
        e(f"buffer_load_dwordx4 {R(RA+4*r,4)}, v{X+5}, s[{SRDW}:{SRDW+3}], {'0' if r == 0 else f's{42+r}'} offen")
    e(f"v_max3_u32 v{X+10}, v240, v241, v242")
    e(f"v_max_u32 v{X+10}, v{X+10}, v243")
    e(f"v_cmp_lt_u32 vcc, 0x8ffff, v{X+10}")
    e(f"s_mov_b32 s{sNEEDB}, 0")
    e("s_waitcnt vmcnt(4) lgkmcnt(0)")
    e("s_cbranch_vccz K2_NOB0")
    e(f"s_mov_b32 s{sNEEDB}, 1")
    for r in range(4):
        e(f"v_cmp_lt_u32_sdwa vcc, v{X+3}, v{240+r} src0_sel:DWORD src1_sel:WORD_1")
        e("s_nop 1")
        e(f"v_cndmask_b32 v{X+5}, v{X+4}, v{X+6+r}, vcc")
        e(f"buffer_load_dwordx4 {R(RBk+4*r,4)}, v{X+5}, s[{SRDW}:{SRDW+3}], {'0' if r == 0 else f's{42+r}'} offen offset:128")
    lab("K2_NOB0")
    e("s_barrier")
    e(f"v_cmpx_lt_u32 vcc, 0x10ffff, v{X+10}")
    e(f"v_mov_b32 v{X+4}, 0")
    e(f"ds_write_b32 v{X+4}, v{ONE} offset:{FLAG}")
    e("s_mov_b64 exec, -1")
    e(f"v_add_u32 v{T0+4}, {RING}, v{T0+3}")
    for f in range(8): e(f"ds_read_b128 {R(NUM+4*f,4)}, v{T0+4} offset:{f*1024}")
    for f in range(16): e(f"ds_read_b128 {R(WB+4*f,4)}, v{T0+4} offset:{8192 + f*1024}")
    def count(base, waits):
        for r in range(4):
            if waits: e(f"s_waitcnt vmcnt({3-r})")
            for i in range(3):
                t = X + (3*r + i) % 6
                e(f"v_lshlrev_b32_sdwa v{t}, 2, v{base+4*r+3} dst_sel:DWORD dst_unused:UNUSED_PAD src0_sel:DWORD src1_sel:BYTE_{i}")
                e(f"v_cmpx_ne_u32 vcc, 0, v{t}")
                e(f"ds_add_rtn_u32 v{base+16+3*r+i}, v{t}, v{ONE} offset:{CNT}")
            e("s_mov_b64 exec, -1")
    count(RA, True)
    stamp(2)
    e(f"s_cmp_eq_u32 s{sNEEDB}, 0")
    e("s_cbranch_scc1 K2_NOB1")
    count(RBk, False)
    lab("K2_NOB1")
    e("s_waitcnt lgkmcnt(0)")
    e("s_barrier")
    stamp(3)
    e(f"s_cmp_lg_u32 s{sWV}, 0")
    e("s_cbranch_scc1 K2_NOSORT")
    S = 160
    e(f"ds_read_b128 {R(X,4)}, v{T0+3} offset:{CNT}")
    e(f"v_lshlrev_b32 v{T0+4}, 2, v{LANE}")
    e(f"v_sub_u32 v{T0}, 252, v{T0+4}")
    e(f"v_mov_b32 v{T0+2}, 0xffff")
    for i in range(4):
        e(f"v_add_u32 v{X+12+i}, {i-1}, v{T0+4}")
        e(f"v_cmp_gt_u32 s[{48+2*i}:{49+2*i}], s{sNN}, v{X+12+i}")
    e("s_waitcnt lgkmcnt(0)")
    for i in range(4):
        e(f"v_min_u32 v{X+4+i}, 62, v{X+i}")
        e(f"v_lshl_add_u32 v{X+4+i}, v{X+4+i}, 2, 4")
        e(f"v_cndmask_b32 v{X+4+i}, 0, v{X+4+i}, s[{48+2*i}:{49+2*i}]")
        e(f"ds_add_rtn_u32 v{X+8+i}, v{X+4+i}, v{ONE} offset:{HIST2}")
    e(f"ds_read_b32 v{S}, v{T0} offset:{HIST2}")
    for i in range(4):
        e(f"v_sub_u32 v{X+4+i}, 252, v{X+4+i}")
        e(f"v_add_u32 v{X+12+i}, s{sNB}, v{X+12+i}")
        e(f"v_lshl_or_b32 v{X+12+i}, v{X+i}, 16, v{X+12+i}")
        e(f"v_cndmask_b32 v{X+12+i}, v{T0+2}, v{X+12+i}, s[{48+2*i}:{49+2*i}]")
    e("s_waitcnt lgkmcnt(0)")
    e(f"v_mov_b32 v{S+1}, v{S}")
    scan_incl(S+1)
    e(f"v_sub_u32 v{S+1}, v{S+1}, v{S}")
    for i in range(4): e(f"ds_bpermute_b32 v{X+4+i}, v{X+4+i}, v{S+1}")
    e(f"v_mov_b32 v{T0+2}, {255*8}")
    for i in range(4):
        e(f"s_waitcnt lgkmcnt({3-i+2*i})")
        e(f"v_add_lshl_u32 v{X+4+i}, v{X+4+i}, v{X+8+i}, 2")
        e(f"v_lshlrev_b32 v{X+8+i}, 1, v{X+4+i}")
        e(f"v_cndmask_b32 v{X+8+i}, v{T0+2}, v{X+8+i}, s[{48+2*i}:{49+2*i}]")
        e(f"ds_read_b64 {P(S+4+2*i)}, v{X+8+i} offset:{TABLE}")
        e(f"ds_write_b32 v{X+4+i}, v{X+12+i} offset:{ORD}")
    e(f"v_lshlrev_b32 v{T0}, 5, v{LANE}")
    e("s_waitcnt lgkmcnt(0)")
    e(f"ds_write_b128 v{T0}, {R(S+4,4)} offset:{INFO}")
    e(f"ds_write_b128 v{T0}, {R(S+8,4)} offset:{INFO+16}")
    e("s_waitcnt lgkmcnt(0)")
    lab("K2_NOSORT")
    e(f"s_lshl_b32 s42, s{sG}, 5")
    e("s_sub_u32 s42, s42, 56")
    e(f"s_mov_b32 s{sSH}, 0")
    e(f"s_cmp_eq_u32 s{sG}, 2"); e("s_cselect_b32 s42, 24, s42"); e(f"s_cselect_b32 s{sSH}, 1, s{sSH}")
    e(f"s_cmp_eq_u32 s{sG}, 1"); e("s_cselect_b32 s42, 8, s42");  e(f"s_cselect_b32 s{sSH}, 1, s{sSH}")
    e(f"s_cmp_eq_u32 s{sG}, 0"); e("s_cselect_b32 s42, 0, s42");  e(f"s_cselect_b32 s{sSH}, 2, s{sSH}")
    e(f"s_lshr_b32 s43, 0x70, s{sSH}")
    e("s_and_b32 s43, s43, 0x70")
    e("s_lshl_b32 s42, s42, 2")
    e(f"v_and_b32 v{T0}, s43, v{EA}")
    e(f"v_add_u32 v{T0}, s42, v{T0}")
    e(f"v_mov_b32 v{T0+2}, 0")
    e("s_barrier")
    stamp(4)
    e(f"ds_read_b128 {R(REC4,4)}, v{T0} offset:{ORD}")
    e(f"ds_read_b32 v{X}, v{T0+2} offset:{ORD}")
    e(f"ds_read_b32 v{X+1}, v{T0+2} offset:{ORD+160}")
    e(f"ds_read_b32 v{X+2}, v{T0+2} offset:{FLAG}")
    def inforead(base):
        for r in range(4):
            for i in range(3):
                t = X + 4 + (3*r + i) % 6
                e(f"v_lshlrev_b32_sdwa v{t}, 3, v{base+4*r+3} dst_sel:DWORD dst_unused:UNUSED_PAD src0_sel:DWORD src1_sel:BYTE_{i}")
                e(f"ds_read_b64 {P(base+28+2*(3*r+i))}, v{t} offset:{INFO}")
    def ellwrite(base):
        for k in range(12):
            r, i = divmod(k, 3)
            e(f"v_mad_u32_u24 v{base+28+2*k}, v{base+16+k}, v{base+29+2*k}, v{base+28+2*k}")
            e(f"ds_write_b32 v{base+28+2*k}, v{base+4*r+i}")
    inforead(RA)
    e("s_waitcnt lgkmcnt(12)")
    e(f"v_readfirstlane_b32 s42, v{X}")
    e(f"v_readfirstlane_b32 s43, v{X+1}")
    e(f"v_readfirstlane_b32 s44, v{X+2}")
    e(f"v_readfirstlane_b32 s45, v{REC4}")
    e(f"s_cmp_gt_u32 s42, {(56 << 16) | 0xffff}")
    e("s_cselect_b32 s44, 1, s44")
    e(f"s_cmp_gt_u32 s43, {(28 << 16) | 0xffff}")
    e("s_cselect_b32 s44, 1, s44")
    e("s_cmp_lg_u32 s44, 0")
    e("s_cbranch_scc1 K2_SLOW")
    e("s_lshr_b32 s45, s45, 16")
    e(f"s_lshl_b32 s46, 1, s{sSH}")
    e("s_add_u32 s45, s45, s46")
    e("s_sub_u32 s45, s45, 1")
    e(f"s_lshr_b32 s{sT}, s45, s{sSH}")
    e(f"s_lshl_b32 s45, s{sT}, 7")
    e(f"v_add_u32 v{T0}, s45, v{EA}")
    e(f"ds_write_b128 v{T0}, {R(REC4,4)} offset:{ELL+128}")
    e("s_nop 1")
    for g in dma_tile(REC4, 0):
        for s in g: e(s)
    e("s_waitcnt lgkmcnt(0)")
    ellwrite(RA)
    e(f"s_cmp_eq_u32 s{sNEEDB}, 0")
    e("s_cbranch_scc1 K2_NOB2")
    inforead(RBk)
    e("s_waitcnt lgkmcnt(0)")
    ellwrite(RBk)
    lab("K2_NOB2")
    e(f"s_mov_b32 s{sMODE}, 0")
    e("s_waitcnt lgkmcnt(0)")
    e("s_barrier")
    stamp(5)
    for t in range(3): e(f"ds_read_b128 {R(G0+4*t,4)}, v{EA} offset:{ELL + (t+1)*128}")
    e(f"ds_read_b32 v{RECE}, v{EB_A} offset:{ELL+128}")
    e(f"ds_read_b128 {R(REC4,4)}, v{EA} offset:{ELL + 4*128}")
    e("s_waitcnt lgkmcnt(4)")
    for g in dma_tile(G0, 1):
        for s in g: e(s)
    e("s_waitcnt lgkmcnt(3)")
    for g in dma_tile(G0+4, 2):
        for s in g: e(s)
    e("s_waitcnt vmcnt(8)")
    for s in range(4): e(xread(s, 0))
    e(f"s_mov_b32 s{sK}, {NLOG2E:#x}"); e(f"s_mov_b32 s{sK+1}, {NLOG2E:#x}")
    for i in range(32): e(f"v_mov_b32 v{DEN+i}, 0")
    e("s_waitcnt lgkmcnt(0)")
    for cb in range(2):
        for s in range(4): e(mfma(AT+16*cb, NUM+16*cb+4*s, X+4*s, None if s == 0 else AT+16*cb))
    for g in dma_tile(G0+8, 0):
        for s in g: e(s)
    e(f"v_pk_sub_u16 v{EB}, v{RECE}, s{sPADC} clamp")
    for i in range(32): e(f"v_mov_b32 v{NUM+i}, 0")
    for i in range(16): e(f"v_pk_mul_f32 {P(AT+2*i)}, {P(AT+2*i)}, s[{sK}:{sK+1}]")
    lab("K2_PIPE")
    e("s_waitcnt vmcnt(8)")
    stamp(6)
    for s in range(4): e(xread(s, 1))
    e(f"v_add_u32 v{EA}, 128, v{EA}")
    e(f"v_add_u32 v{EB_A}, 128, v{EB_A}")
    gm = g_mf(0, G0)
    e(gm[0])
    for s in range(4):
        e(f"s_waitcnt lgkmcnt({3-s})"); e(gm[1+s])
    e(f"s_cmp_eq_u32 s{sT}, 0")
    e("s_cbranch_scc1 K2_DONE")
    e("s_nop 7"); e("s_nop 3")
    L.append(".p2align 6")
    lab("K2_LOOP")
    for j, k in enumerate((1, 2, 0)):
        body(k, j)
        e(f"s_sub_u32 s{sT}, s{sT}, 1")
        if j < 2:
            e(f"s_cmp_eq_u32 s{sT}, 0")
            e("s_cbranch_scc1 K2_DONE")
        else:
            e(f"v_add_u32 v{EA}, 384, v{EA}")
            e(f"v_add_u32 v{EB_A}, 384, v{EB_A}")
            e(f"s_cmp_lg_u32 s{sT}, 0")
            e("s_cbranch_scc1 K2_LOOP")
    lab("K2_DONE")
    stamp(7)
    e(f"s_cmp_lg_u32 s{sMODE}, 0")
    e("s_cbranch_scc1 K2_SLOW_NEXT")
    lab("K2_EPI")
    e(f"v_lshlrev_b32 v{T0+3}, 4, v{LANE}")
    for f in range(8): e(f"ds_read_b128 {R(WB+4*f,4)}, v{T0+3} offset:{WU + f*1024}")
    e(f"s_cmp_eq_u32 s{sSH}, 0")
    e("s_cbranch_scc1 K2_NOCOMB")
    for i in range(64): e(f"v_add_f32_dpp v{NUM+i}, v{NUM+i}, v{NUM+i} quad_perm:[1,0,3,2] row_mask:0xf bank_mask:0xf")
    e(f"s_cmp_eq_u32 s{sSH}, 1")
    e("s_cbranch_scc1 K2_NOCOMB")
    for i in range(64): e(f"v_add_f32_dpp v{NUM+i}, v{NUM+i}, v{NUM+i} quad_perm:[2,3,0,1] row_mask:0xf bank_mask:0xf")
    lab("K2_NOCOMB")
    e(f"s_mov_b32 s{sK}, {EPS:#x}"); e(f"s_mov_b32 s{sK+1}, {EPS:#x}")
    for i in range(16): e(f"v_pk_add_f32 {P(DEN+2*i)}, {P(DEN+2*i)}, s[{sK}:{sK+1}]")
    e("s_waitcnt lgkmcnt(0)")
    um = [mfma(G0+16*cb, WB+16*cb+4*s, X+4*s, None if s == 0 else G0+16*cb) for cb in range(2) for s in range(4)]
    for i in range(32):
        if i % 3 == 0 and i // 3 < 8: e(um[i // 3])
        e(f"v_rcp_f32 v{DEN+i}, v{DEN+i}")
    e(f"v_and_b32 v{T0}, 32, v{LANE}")
    e(f"v_lshlrev_b32 v{T0}, 1, v{T0}")
    e(f"v_mad_u32_u16 v{T0}, v{RECE}, s{sC128}, v{T0}")
    e(f"s_lshl_b32 s42, 1, s{sSH}")
    e("s_sub_u32 s42, s42, 1")
    e(f"v_and_b32 v{T0+1}, s42, v{LANE}")
    e(f"v_cmp_eq_u32 vcc, 0, v{T0+1}")
    e(f"v_bfrev_b32 v{T0+1}, 1")
    e("s_mov_b32 s43, 0xffff0000")
    e(f"v_cndmask_b32 v{T0}, v{T0+1}, v{T0}, vcc")
    for q in range(4):
        for i in range(4):
            c = 8*q + 2*i
            e(f"v_pk_fma_f32 {P(NUM+c)}, {P(NUM+c)}, {P(DEN+c)}, {P(G0+c)}")
            e(f"v_lshlrev_b32 v{DEN+c}, 16, v{X+4*q+i}")
            e(f"v_and_b32 v{DEN+c+1}, s43, v{X+4*q+i}")
            e(f"v_max_f32 v{NUM+c}, 0, v{NUM+c}")
            e(f"v_max_f32 v{NUM+c+1}, 0, v{NUM+c+1}")
            e(f"v_pk_add_f32 {P(NUM+c)}, {P(NUM+c)}, {P(DEN+c)}")
            e(f"v_cvt_pk_bf16_f32 v{VV+4*q+i}, v{NUM+c}, v{NUM+c+1}")
        e(f"buffer_store_dwordx4 {R(VV+4*q,4)}, v{T0}, s[{SRDO}:{SRDO+3}], 0 offen offset:{16*q}")
    if STAMP:
        e("s_waitcnt vmcnt(0)")
        stamp(8)
        e("s_lshl_b32 s42, s2, 3"); e(f"s_add_u32 s42, s42, s{sWV}")
        stamp_flush(9, sWS, 1, 42, T0)
    lab("K2_X")
    e("s_endpgm")
    gen_slow()

def gen_slow():
    lab("K2_SLOW")
    lab("K2_SLOW_NEXT")
    e("s_endpgm")

hdr = open("cdna_kernels/" + NAME + ".s.ref").read().split("\n")
hdr = [l for l in hdr if l.startswith(";") and "@launch" not in l and "Override launch" not in l and "grid=ceil" not in l]
txt = "\n".join(hdr) + "\n"
txt += f"; @launch kernel={K1} grid=(255,1,1) block=(800,1,1) lds={K1_LDS}\n"
txt += f"; @launch kernel={K2} grid=(256,1,1) block=(512,1,1) lds={K2_LDS}\n"
txt += '.amdgcn_target "amdgcn-amd-amdhsa--gfx950"\n.text\n'
gen_k1(); gen_k2()
txt += "\n".join(L) + "\n"
txt += '.section .rodata,"a"\n' + kdesc(K1, 64, 96) + "\n" + kdesc(K2, 256, 96) + "\n"
open(OUT, "w").write(txt)
```
